```python
import torch

def _softmax(x, axis=-1):
    return torch.softmax(x, dim=axis)
def _gelu(x):
    return torch.nn.functional.gelu(x, approximate="tanh")
def _silu(x):
    return torch.nn.functional.silu(x)
def _sigmoid(x):
    return torch.sigmoid(x)
def _layernorm(x, axis=-1, eps=1e-5):
    m = x.mean(dim=axis, keepdim=True)
    v = x.var(dim=axis, keepdim=True, unbiased=False)
    return (x - m) / torch.sqrt(v + eps)
def _scatter_add(tgt, idx, src, axis=0):
    return tgt.clone().index_add_(axis, idx, src)
def _segment_sum(src, seg, n):
    out = torch.zeros((n,) + src.shape[1:], dtype=src.dtype)
    return out.index_add_(0, seg, src)
def _pad(x, pw):
    flat = tuple(v for pair in reversed(pw) for v in pair)
    return torch.nn.functional.pad(x, flat)

kernel_name = 'gated_mix__sliding_local_dilated__mixer_s_mlp__prompt'

def setup_inputs():

    _w = (lambda a: (lambda t: t.to(torch.bfloat16) if t.is_floating_point() else t)(torch.as_tensor(a)))
    def _A_setup():
        B, S, D = 1, 2048, 576
        return {
            "x": _w((lambda *s: torch.randn(*s, dtype=torch.bfloat16) * 0.05)(B, S, D)),
            "wqkv": _w((lambda *s: torch.randn(*s, dtype=torch.bfloat16) * 1.6)(D, 3 * D)),
            "wo": _w((lambda *s: torch.randn(*s, dtype=torch.bfloat16) * 0.05)(D, D)),
        }
    _A_in = _A_setup()

    def _B_setup():
        B, S, D, F = 1, 2048, 576, 4608
        return {
            "x":  _w((lambda *s: torch.randn(*s, dtype=torch.bfloat16) * 0.05)(B, S, D)),
            "w1": _w((lambda *s: torch.randn(*s, dtype=torch.bfloat16) * 3.2)(D, D) * (D ** -0.5)),
            "w2": _w((lambda *s: torch.randn(*s, dtype=torch.bfloat16) * 3.2)(D, D) * (D ** -0.5)),
            "w3": _w((lambda *s: torch.randn(*s, dtype=torch.bfloat16) * 3.2)(D, F) * (D ** -0.5)),
            "w4": _w((lambda *s: torch.randn(*s, dtype=torch.bfloat16) * 3.2)(F, D) * (F ** -0.5)),
        }
    _B_in = _B_setup()

    return {
        "A_x": _A_in["x"],
        "A_wqkv": _A_in["wqkv"],
        "A_wo": _A_in["wo"],
        "B_x": _B_in["x"],
        "B_w1": _B_in["w1"],
        "B_w2": _B_in["w2"],
        "B_w3": _B_in["w3"],
        "B_w4": _B_in["w4"],
        "gate_w": _w((lambda *s: torch.randn(*s, dtype=torch.bfloat16) * 0.05)(576) * 16.0),
    }

def reference(A_x, A_wqkv, A_wo, B_x, B_w1, B_w2, B_w3, B_w4, gate_w):
    def _A_ref(x, wqkv, wo):
        B, S, D = x.shape
        H = 32; Dh = D // H
        W, dil = 8, 2
        qkv = (lambda x, *d: x.permute(*d))((x @ wqkv).reshape(B, S, 3, H, Dh), 2, 0, 3, 1, 4)
        q, k, v = qkv[0], qkv[1], qkv[2]
        scale = Dh ** -0.5
        pos = torch.arange(S)
        off = torch.arange(W) * dil
        idx = pos[:, None] - off[None, :]
        mask = idx >= 0
        idx_c = torch.where(mask, idx, 0).reshape(-1)
        kg = k[:, :, idx_c, :].reshape(B, H, S, W, Dh)
        vg = v[:, :, idx_c, :].reshape(B, H, S, W, Dh)
        logits = torch.einsum("bhsd,bhswd->bhsw", q, kg) * scale
        logits = torch.where(mask[None, None, :, :], logits, -1e9)
        attn = _softmax(logits, axis=-1)
        o = torch.einsum("bhsw,bhswd->bhsd", attn, vg)
        return (lambda x, *d: x.permute(*d))(o, 0, 2, 1, 3).reshape(B, S, D) @ wo

    def _B_ref(x, w1, w2, w3, w4):
        B, S, D = x.shape
        h = _gelu(_layernorm(x, axis=-1) @ w1)
        c = D // 4
        g0 = _pad(h[:, :, 0*c:1*c], ((0, 0), (1, 0), (0, 0)))[:, :S, :]
        g1 = _pad(h[:, :, 1*c:2*c], ((0, 0), (0, 1), (0, 0)))[:, 1:, :]
        g2 = _pad(h[:, :, 2*c:3*c], ((0, 0), (2, 0), (0, 0)))[:, :S, :]
        g3 = _pad(h[:, :, 3*c:   ], ((0, 0), (0, 2), (0, 0)))[:, 2:, :]
        hs = torch.concatenate([g0, g1, g2, g3], axis=-1) @ w2
        x1 = x + hs
        h2 = _gelu(_layernorm(x1, axis=-1) @ w3) @ w4
        return x1 + h2

    x = A_x
    g = _sigmoid((x * gate_w).sum(-1, keepdims=True))
    a = _A_ref(x, A_wqkv, A_wo)
    b = _B_ref(x, B_w1, B_w2, B_w3, B_w4)
    return g * a + (1 - g) * b
```

```python
import re


class K:
    def __init__(self):
        self.ins = []
        self.vm = 0
        self.vm_done = 0
        self.lg = 0
        self.lg_done = 0
        self.nlabel = 0

    def e(self, text):
        for t in text.strip().split("\n"):
            t = t.strip()
            if t:
                self.ins.append(t)

    def c(self, text):
        self.ins.append("; " + text)

    def vmem(self, text):
        self.ins.append(text)
        self.vm += 1
        return self.vm

    def ds(self, text):
        self.ins.append(text)
        self.lg += 1
        return self.lg

    def wait(self, vm=None, lg=None):
        parts = []
        if vm is not None and vm > self.vm_done:
            n = min(self.vm - vm, 63)
            parts.append(f"vmcnt({n})")
            self.vm_done = max(self.vm_done, self.vm - n)
        if lg is not None and lg > self.lg_done:
            n = min(self.lg - lg, 15)
            parts.append(f"lgkmcnt({n})")
            self.lg_done = max(self.lg_done, self.lg - n)
        if parts:
            self.ins.append("s_waitcnt " + " ".join(parts))

    def wait_all_lg(self):
        self.wait(lg=self.lg)

    def wait_all_vm(self):
        self.wait(vm=self.vm)

    def label(self, base):
        self.nlabel += 1
        return f"L_{base}_{self.nlabel}"


_REG = re.compile(r"^(-|abs\()?\s*([vas])(\d+)\)?$|^(-)?([vas])\[(\d+):(\d+)\]$")
TRANS = ("v_exp_f32", "v_log_f32", "v_rcp_f32", "v_rsq_f32", "v_sqrt_f32", "v_sin_f32", "v_cos_f32")


def regs_of(op):
    op = op.strip()
    if op in ("vcc",):
        return {"vcc"}
    if op == "exec":
        return {"exec"}
    if op == "m0":
        return {"m0"}
    m = _REG.match(op)
    if not m:
        return set()
    if m.group(2):
        return {m.group(2) + m.group(3)}
    return {m.group(5) + str(r) for r in range(int(m.group(6)), int(m.group(7)) + 1)}


class I:
    __slots__ = ("text", "op", "kind", "w", "r", "passes", "bigstore", "srcc", "srcab", "dpp")

    def __init__(self, text):
        self.text = text
        t = text.split(";")[0].strip()
        self.w = set()
        self.r = set()
        self.passes = 0
        self.bigstore = set()
        self.srcc = set()
        self.srcab = set()
        self.dpp = False
        if not t or t.endswith(":") or t.startswith("."):
            self.op = ""
            self.kind = "none"
            return
        sp = t.split(None, 1)
        self.op = op = sp[0]
        rest = sp[1] if len(sp) > 1 else ""
        ops = [o.strip() for o in rest.split(",")]
        if ops:
            last = ops[-1].split()
            if last:
                ops[-1] = last[0]
                mods = last[1:]
            else:
                mods = []
        else:
            mods = []
        R = [regs_of(o) for o in ops]
        if op.startswith("v_mfma"):
            self.kind = "mfma"
            self.w = R[0]
            self.srcab = R[1] | R[2]
            self.srcc = R[3] if len(R) > 3 else set()
            self.r = self.srcab | self.srcc
            self.passes = 8 if "32x32" in op else 4
        elif op.startswith("v_"):
            self.kind = "valu"
            if op.startswith("v_cmp"):
                self.w = R[0]
                self.r = set().union(*R[1:])
            elif op.startswith("v_permlane"):
                self.w = R[0] | R[1]
                self.r = R[0] | R[1]
            elif op in ("v_add_co_u32", "v_sub_co_u32", "v_addc_co_u32"):
                self.w = R[0] | R[1]
                self.r = set().union(*R[2:])
            elif op in ("v_fmac_f32", "v_dot2c_f32_bf16"):
                self.w = R[0]
                self.r = set().union(*R)
            elif op == "v_nop":
                pass
            else:
                self.w = R[0]
                self.r = set().union(*R[1:]) if len(R) > 1 else set()
            if any(m.startswith(("row_", "quad_perm", "wave_")) for m in mods):
                self.dpp = True
        elif op.startswith(("buffer_", "global_")):
            self.kind = "vmem"
            lds = "lds" in mods
            if op.startswith("buffer_wbl2") or op.startswith("buffer_inv"):
                pass
            elif lds:
                self.r = set().union(*R) | {"m0"}
            elif "load" in op:
                self.w = R[0]
                self.r = set().union(*R[1:])
            else:
                self.r = set().union(*R)
                if "x4" in op or "x3" in op:
                    self.bigstore = R[0]
        elif op.startswith("ds_"):
            self.kind = "ds"
            if op.startswith("ds_read") or op.startswith("ds_bpermute"):
                self.w = R[0]
                self.r = set().union(*R[1:])
            else:
                self.r = set().union(*R)
        elif op.startswith("s_"):
            self.kind = "salu"
            if op in ("s_nop", "s_waitcnt", "s_barrier", "s_endpgm", "s_sleep", "s_setprio") or op.startswith(
                ("s_branch", "s_cbranch")
            ):
                pass
            elif op.startswith("s_cmp") or op.startswith("s_bitcmp"):
                self.r = set().union(*R)
            else:
                self.w = R[0]
                self.r = set().union(*R[1:]) if len(R) > 1 else set()
        else:
            raise ValueError("unparsed instruction: " + text)
        if self.kind == "valu" and op.startswith("v_cndmask") and len(ops) == 3:
            self.r |= {"vcc"}

    def states(self):
        if self.kind == "none":
            return 0
        if self.op == "s_nop":
            return int(self.text.split()[1]) + 1
        return 1


def is_v(rs):
    return {x for x in rs if x[0] in "va" and x not in ("vcc",)}


def is_s(rs):
    return {x for x in rs if x[0] == "s" or x == "vcc"}


def need(p, c):
    n = 0
    if p.kind == "valu":
        pv = is_v(p.w)
        ps = is_s(p.w)
        if c.kind == "mfma" and pv & c.r:
            n = max(n, 2)
        if c.kind == "valu":
            if p.op in TRANS and c.op not in TRANS and pv & c.r:
                n = max(n, 1)
            if p.op in TRANS and c.op in TRANS and pv & c.r:
                n = max(n, 1)
            if c.op.startswith(("v_readlane", "v_readfirstlane")) and pv & c.r:
                n = max(n, 1)
            if c.op.startswith("v_permlane") and pv & c.r:
                n = max(n, 2)
            if c.dpp and pv & c.r:
                n = max(n, 2)
            if ps & c.r:
                n = max(n, 4 if c.op.startswith(("v_readlane", "v_writelane")) else 2)
            if p.op.startswith("v_dot") and (pv & (c.r | c.w)):
                if not (c.op == p.op):
                    n = max(n, 3)
                else:
                    n = max(n, 0)
        if c.kind == "vmem" and ps & c.r:
            n = max(n, 5)
        if p.op.startswith("v_dot") and c.kind in ("vmem", "ds", "mfma") and pv & c.r:
            n = max(n, 3)
        if c.kind == "salu" and ps & c.r:
            n = max(n, 1)
    elif p.kind == "mfma":
        big = p.passes == 8
        if c.kind == "mfma":
            if p.w & c.srcab:
                n = max(n, 12 if big else 8)
            if p.w & c.srcc and not (p.w == c.srcc and p.passes == c.passes):
                n = max(n, 10 if big else 6)
            if p.w & c.w and not (p.w == c.srcc):
                n = max(n, 10 if big else 6)
        elif c.kind in ("valu", "vmem", "ds"):
            if p.w & (c.r | c.w):
                n = max(n, 12 if big else 8)
            if c.kind == "valu" and p.srcc & c.w:
                n = max(n, 7 if big else 3)
    elif p.kind == "salu":
        if "m0" in p.w and c.kind == "vmem" and "m0" in c.r:
            n = max(n, 1)
    elif p.kind == "vmem":
        if p.bigstore and p.bigstore & c.w:
            n = max(n, 2 if c.kind == "valu" else 1)
    return n


def fix_hazards(lines, verbose=False):
    out = []
    win = []
    inserted = 0
    for t in lines:
        c = I(t)
        if c.kind != "none":
            req = 0
            dist = 0
            for p in reversed(win):
                n = need(p, c)
                if n > dist:
                    req = max(req, n - dist)
                dist += p.states()
                if dist >= 20:
                    break
            if req > 0:
                nop = I(f"s_nop {req - 1}")
                out.append(nop.text)
                win.append(nop)
                inserted += req
                if verbose:
                    print("hazard pad", req, "before", t)
            win.append(c)
            if len(win) > 40:
                win = win[-30:]
        out.append(t)
    return out, inserted
```

```python
import sys
from core import K, fix_hazards

NAME = "gated_mix__sliding_local_dilated__mixer_s_mlp__prompt_kernel"

TILE = 73728
SH_OFF = 0
X1_OFF = SH_OFF + 32 * TILE
PART_OFF = X1_OFF + 32 * TILE
KVH_OFF = PART_OFF + 256 * TILE
KVH_SZ = 6656
FLAG_OFF = KVH_OFF + 256 * KVH_SZ
TS_OFF = FLAG_OFF + 4096
WS_USED = TS_OFF + 256 * 4 * 128
F_H, F_KV, F_X1, F_P = 0, 1, 2, 3

SLOT = 16384
NSLOT = 5
RING = 0
XH = NSLOT * SLOT
GATE = XH + TILE
GW = GATE + 256
EBUF = 157184
LDS_BYTES = EBUF + 2048
PITCH = 208
KB_ = 0
VB_ = 80 * PITCH
QB_ = 2 * 80 * PITCH
OST = XH + 46592

sX, sQKV, sWO, sW1, sW2, sW3, sW4, sGW, sOUT, sDBG, sWS = (f"s[{4*i+4}:{4*i+7}]" for i in range(11))
sI, sJ, sWV, sNONCE = "s48", "s49", "s50", "s51"
sT0, sT1, sT2, sT3 = "s52", "s53", "s54", "s55"
sEX = "s[56:57]"
sSPIN = "s58"
sSO = "s59"
sWIN = "s60"
sONES = "s61"
sHI = "s62"
sWODD = "s63"
sB0 = "s64"
sB1 = "s65"
sB2 = "s66"
sB3 = "s67"
sB4 = "s68"
sB5 = "s69"
sB6 = "s70"
sM0W = "s71"
sK0, sK1 = "s72", "s73"
sTS = 80

SPIN_MAX = 400000

vL = 0
vXR = 8
vB2 = 80
vACC = 152
vW = 172
vTRc = 196
vTRb = 201
vDF = 206
vKV = 210
vXRES = 220
vCP = 230
vTX1 = 233
vTSH = 234
vNON = 235
vT = 236
vK0 = 255
mBV = 8
mO = 40
mACC = 80
mW = 144
mG = 160
mPK = 168
mC = 176
mTRc = 178
mTR3, mTR4, mTR3h, mTR4h, mTRE, mTREh = 179, 180, 181, 182, 183, 184
mD3 = 220
mD4 = 224
mD3h, mD4h = 228, 229
mXA, mXB = 195, 196
mHA, mHB, mHH = 197, 198, 199
mPA, mPB, mPH = 200, 201, 202
mST = 204


def v(n, c=1):
    return f"v{n}" if c == 1 else f"v[{n}:{n+c-1}]"


def a(n, c=1):
    return f"a{n}" if c == 1 else f"a[{n}:{n+c-1}]"


def bfrag(idx):
    return a(4 * idx, 4) if idx < 64 else v(mBV + 4 * (idx - 64), 4)


class Gen:
    def __init__(self, stamps=False, LA=4, stop=None, lead32=2, lead16=5):
        self.k = K()
        self.stamps = stamps
        self.nst = 0
        self.LA = LA
        self.stop = stop
        self.lead32 = lead32
        self.lead16 = lead16
        self.stages = []
        self.issued = 0
        self.last_read_tok = {}
        self.pre = {}
        self.post = {}

    def stamp(self, name):
        if not self.stamps:
            return
        k = self.k
        r = sTS + self.nst
        assert r <= 99
        k.wait_all_lg()
        k.e(f"s_memtime s[100:101]")
        k.e("s_waitcnt lgkmcnt(0)")
        k.e(f"s_mov_b32 s{r}, s100")
        self.nst += 1
        self.stamp_names = getattr(self, "stamp_names", []) + [name]

    def set_exec(self, mask):
        if mask == -1 or mask < (1 << 31):
            self.k.e(f"s_mov_b64 exec, {mask}")
        else:
            self.k.e(f"s_mov_b32 exec_lo, {hex(mask & 0xffffffff)}")
            self.k.e(f"s_mov_b32 exec_hi, {hex(mask >> 32)}")

    def slot_off(self, s):
        return RING + (s % NSLOT) * SLOT

    def add_stage(self, fn):
        self.stages.append(dict(dma=fn, tok=None))
        return len(self.stages) - 1

    def dma_closures(self, s):
        if s >= len(self.stages):
            return []
        st = self.stages[s]
        cl = st["dma"](self.slot_off(s))
        k = self.k

        def fin():
            st["tok"] = k.vm
        last = cl[-1]
        cl[-1] = lambda last=last: (last(), fin())
        assert s == self.issued, (s, self.issued)
        self.issued = s + 1
        return cl

    def enter(self, s):
        k = self.k
        st = self.stages[s]
        assert st["tok"] is not None, s
        lg = None
        if self.LA == NSLOT - 1 and (s - 1) in self.last_read_tok:
            lg = self.last_read_tok[s - 1]
        for f in self.pre.pop(s, []):
            f()
        k.wait(vm=st["tok"], lg=lg)
        k.e("s_barrier")
        for f in self.post.pop(s, []):
            f()
        return self.dma_closures(s + self.LA)

    def dma_front(self, srd, stride, sbase, colbytes, st):
        k = self.k
        va = vDF if stride == 1152 else vDF + 2

        def fn(slot):
            cl = []

            def head():
                k.e(f"s_add_u32 {sSO}, {sbase}, {sWIN}")
                k.e(f"s_add_u32 {sSO}, {sSO}, {64 * st * stride + colbytes}")
                k.e(f"s_add_u32 m0, {sM0W}, {slot}")
            cl.append(head)
            for n in range(4):
                def one(n=n):
                    if n:
                        k.e(f"s_add_u32 {sSO}, {sSO}, {4 * stride - 1024}")
                    k.vmem(f"buffer_load_dwordx4 {v(va + (n >> 1))}, {srd}, {sSO} offen offset:{1024 * n} lds")
                cl.append(one)
            return cl
        return fn

    def dma_full(self, srd, vd, sbase, const, extra=None):
        k = self.k

        def fn(slot):
            cl = []

            def head():
                k.e(f"s_add_u32 {sSO}, {sbase}, {const}")
                k.e(f"s_add_u32 m0, {sM0W}, {slot}")
            cl.append(head)
            for n in range(4):
                cl.append(lambda n=n: k.vmem(
                    f"buffer_load_dwordx4 {v(vd + n)}, {srd}, {sSO} offen offset:{1024 * n} lds"))
            if extra:
                cl += extra()
            return cl
        return fn

    def dma_half(self, srd, vd, stride, sbase, const, nrows, extra=None):
        k = self.k
        ni = nrows // 32

        def fn(slot):
            cl = []

            def head():
                k.e(f"s_add_u32 {sSO}, {sbase}, {const}")
                if ni == 4:
                    k.e(f"s_add_u32 m0, {sM0W}, {slot}")
                else:
                    k.e(f"s_lshr_b32 {sT3}, {sM0W}, 1")
                    k.e(f"s_add_u32 m0, {sT3}, {slot}")
            cl.append(head)
            for n in range(ni):
                def one(n=n):
                    if n:
                        k.e(f"s_add_u32 {sSO}, {sSO}, {8 * stride - 1024}")
                    k.vmem(f"buffer_load_dwordx4 {v(vd)}, {srd}, {sSO} offen offset:{1024 * n} lds")
                cl.append(one)
            if extra:
                cl += extra()
            return cl
        return fn

    def dma_E(self, colbytes, half):
        k = self.k

        def mk():
            def one():
                k.e(f"s_add_u32 {sSO}, {sB4}, {16 * 1152 + colbytes}")
                k.e(f"s_lshr_b32 {sT3}, {sM0W}, {4 if half else 3}")
                k.e(f"s_add_u32 m0, {sT3}, {EBUF}")
                self.set_exec(0xffff if half else 0xffffffff)
                k.vmem(f"buffer_load_dwordx4 {v(mD4h if half else mD4)}, {sWO}, {sSO} offen lds")
                k.e("s_mov_b64 exec, -1")
            return [one]
        return mk

    def flag_store(self, stage):
        k = self.k
        L = k.label("nofl")
        k.e(f"s_cmp_lg_u32 {sWV}, 0")
        k.e(f"s_cbranch_scc1 {L}")
        k.e(f"s_lshl_b32 {sT0}, {sI}, 3")
        k.e(f"s_add_u32 {sT0}, {sT0}, {sJ}")
        k.e(f"s_lshl_b32 {sT0}, {sT0}, 2")
        k.e(f"s_add_u32 {sT0}, {sT0}, {FLAG_OFF + 1024 * stage}")
        k.e(f"v_mov_b32 {v(vT)}, {sT0}")
        k.e(f"v_mov_b32 {v(vT + 1)}, {sNONCE}")
        k.e("s_mov_b64 exec, 1")
        k.e(f"buffer_store_dword {v(vT + 1)}, {v(vT)}, {sWS}, 0 offen sc0 sc1")
        k.e("s_mov_b64 exec, -1")
        k.e(f"{L}:")

    def get_nonce(self, tok):
        k = self.k
        k.wait(vm=tok)
        Lok = k.label("nonce_ok")
        Lp = k.label("nonce_poll")
        k.e(f"v_readfirstlane_b32 {sNONCE}, {v(vNON)}")
        k.e(f"s_cmp_lg_u32 {sNONCE}, 0")
        k.e(f"s_cbranch_scc1 {Lok}")
        k.e(f"s_mov_b32 {sSPIN}, {SPIN_MAX}")
        k.e(f"{Lp}:")
        k.e(f"v_mov_b32 {v(vNON)}, 0")
        k.e(f"buffer_load_dword {v(vNON)}, {v(vNON)}, {sDBG}, 0 offen sc0 sc1")
        k.e("s_waitcnt vmcnt(0)")
        k.e(f"v_readfirstlane_b32 {sNONCE}, {v(vNON)}")
        k.e(f"s_sub_u32 {sSPIN}, {sSPIN}, 1")
        k.e(f"s_cmp_eq_u32 {sSPIN}, 0")
        k.e(f"s_cbranch_scc1 {Lok}")
        k.e(f"s_cmp_eq_u32 {sNONCE}, 0")
        k.e(f"s_cbranch_scc1 {Lp}")
        k.e(f"{Lok}:")

    def poll(self, kind, t0=vT):
        k = self.k
        Ls = k.label("nopoll")
        Lp = k.label("poll")
        va, vd, vb = v(t0), v(t0 + 1), v(t0 + 2)
        k.e(f"s_cmp_lg_u32 {sWV}, 0")
        k.e(f"s_cbranch_scc1 {Ls}")
        if kind == "h":
            k.e(f"s_add_u32 {sT0}, {sI}, 31")
            k.e(f"v_lshrrev_b32 {va}, 3, {v(vL)}")
            k.e(f"v_add_u32 {va}, {sT0}, {va}")
            k.e(f"v_and_b32 {va}, 31, {va}")
            k.e(f"v_lshlrev_b32 {va}, 3, {va}")
            k.e(f"v_and_b32 {vb}, 7, {v(vL)}")
            k.e(f"v_add_u32 {va}, {va}, {vb}")
            k.e(f"v_lshlrev_b32 {va}, 2, {va}")
            k.e(f"v_add_u32 {va}, {FLAG_OFF + 1024 * F_H}, {va}")
            mask = 0x33 | (0xFF << 8) | (0xCC << 16)
        elif kind == "x1kv":
            k.e(f"s_lshl_b32 {sT0}, {sI}, 5")
            k.e(f"s_add_u32 {sT0}, {sT0}, {FLAG_OFF + 1024 * F_X1}")
            k.e(f"s_add_u32 {sT1}, {sI}, 31")
            k.e(f"s_and_b32 {sT1}, {sT1}, 31")
            k.e(f"s_lshl_b32 {sT1}, {sT1}, 3")
            k.e(f"s_add_u32 {sT1}, {sT1}, {sJ}")
            k.e(f"s_lshl_b32 {sT1}, {sT1}, 2")
            k.e(f"s_add_u32 {sT1}, {sT1}, {FLAG_OFF + 1024 * F_KV}")
            k.e(f"v_lshlrev_b32 {va}, 2, {v(vL)}")
            k.e(f"v_add_u32 {va}, {sT0}, {va}")
            k.e(f"v_mov_b32 {vb}, {sT1}")
            k.e(f"v_cmp_eq_u32 vcc, 8, {v(vL)}")
            k.e(f"v_cndmask_b32 {va}, {va}, {vb}, vcc")
            mask = 0x1FF
        else:
            k.e(f"s_lshl_b32 {sT0}, {sI}, 5")
            k.e(f"s_add_u32 {sT0}, {sT0}, {FLAG_OFF + 1024 * F_P}")
            k.e(f"v_lshlrev_b32 {va}, 2, {v(vL)}")
            k.e(f"v_add_u32 {va}, {sT0}, {va}")
            mask = 0xFF
        k.e(f"s_mov_b32 {sSPIN}, {SPIN_MAX}")
        k.e(f"s_mov_b64 exec, {mask}")
        k.e(f"{Lp}:")
        k.e(f"buffer_load_dword {vd}, {va}, {sWS}, 0 offen sc0 sc1")
        k.e("s_waitcnt vmcnt(0)")
        k.e(f"v_cmp_ne_u32 vcc, {sNONCE}, {vd}")
        k.e(f"s_sub_u32 {sSPIN}, {sSPIN}, 1")
        k.e(f"s_cmp_eq_u32 {sSPIN}, 0")
        k.e(f"s_cbranch_scc1 {Lp}_x")
        k.e("s_nop 1")
        k.e(f"s_cbranch_vccnz {Lp}")
        k.e(f"{Lp}_x:")
        k.e("s_mov_b64 exec, -1")
        k.e(f"{Ls}:")

    def prologue(self):
        k = self.k
        e = k.e
        e("s_cmp_ge_u32 s2, 256")
        e("s_cbranch_scc1 L_end")
        e("s_load_dwordx4 s[64:67], s[0:1], 0")
        e("s_load_dwordx2 s[68:69], s[0:1], 16")
        e("s_load_dwordx8 s[72:79], s[0:1], 32")
        e("s_load_dwordx8 s[80:87], s[0:1], 64")
        if self.stamps:
            e("s_memtime s[100:101]")
        e(f"v_lshrrev_b32 v1, 6, v0")
        e(f"v_and_b32 {v(vL)}, 63, v0")
        e(f"v_readfirstlane_b32 {sWV}, v1")
        e(f"s_and_b32 {sT0}, s2, 3")
        e(f"s_lshl_b32 {sT0}, {sT0}, 1")
        e(f"s_bfe_u32 {sT1}, s2, 0x10003")
        e(f"s_add_u32 {sJ}, {sT0}, {sT1}")
        e(f"s_bfe_u32 {sT0}, s2, 0x10002")
        e(f"s_lshl_b32 {sT0}, {sT0}, 4")
        e(f"s_lshr_b32 {sT1}, s2, 4")
        e(f"s_add_u32 {sI}, {sT0}, {sT1}")
        xo = vB2
        for n in range(9):
            e(f"v_add_u32 v1, {64 * n}, {v(vL)}")
            e(f"v_mul_u32_u24 v2, 911, v1")
            e(f"v_lshrrev_b32 v2, 17, v2")
            e(f"v_xor_b32 v1, v1, v2")
            e(f"v_lshlrev_b32 {v(xo + n)}, 4, v1")
        e("s_waitcnt lgkmcnt(0)")
        for srd, lo, size in ((4, 64, 2359296), (8, 66, 1990656), (12, 68, 663552), (16, 72, 663552), (20, 74, 663552),
                              (24, 76, 5308416), (28, 78, 5308416), (32, 80, 1152), (36, 82, 2359296), (40, 84, 256),
                              (44, 86, WS_USED)):
            e(f"s_mov_b32 s{srd}, s{lo}")
            e(f"s_mov_b32 s{srd + 1}, s{lo + 1}")
            e(f"s_mov_b32 s{srd + 2}, {size}")
            e(f"s_mov_b32 s{srd + 3}, 0x20000")
        if self.stamps:
            e("s_mov_b32 s80, s100")
            self.nst = 1
            self.stamp_names = ["start"]
        L = k.label("nolead")
        e(f"s_or_b32 {sT0}, s2, {sWV}")
        e(f"s_cmp_lg_u32 {sT0}, 0")
        e(f"s_cbranch_scc1 {L}")
        e(f"v_lshlrev_b32 v1, 4, {v(vL)}")
        e(f"v_add_u32 v1, {FLAG_OFF}, v1")
        for s in range(4):
            e(f"buffer_load_dwordx4 {v(vACC + 4 * s, 4)}, v1, {sWS}, 0 offen offset:{1024 * s} sc0 sc1")
        e(f"{L}:")
        e(f"s_lshl_b32 {sT0}, {sI}, 2")
        e(f"s_add_u32 {sT0}, {sT0}, {sWV}")
        e(f"s_mul_i32 {sT0}, {sT0}, 18432")
        e(f"s_mul_i32 {sT1}, {sWV}, 18432")
        e(f"s_add_u32 {sT1}, {sT1}, {XH}")
        e(f"s_add_u32 {sT2}, {sT0}, 9216")
        for n in range(18):
            if n >= 9:
                e(f"v_xor_b32 {v(xo + n - 9)}, 64, {v(xo + n - 9)}")
            e(f"s_add_u32 m0, {sT1}, {1024 * n}")
            e("s_nop 0")
            self.xtok = k.vmem(f"buffer_load_dwordx4 {v(xo + n % 9)}, {sX}, {sT0 if n < 9 else sT2} offen lds")
        e(f"s_mul_i32 {sT2}, {sWV}, 288")
        e(f"s_add_u32 m0, {sT2}, {GW}")
        e(f"v_lshlrev_b32 v1, 4, {v(vL)}")
        e("s_mov_b64 exec, 0x3ffff")
        self.gwtok = k.vmem(f"buffer_load_dwordx4 v1, {sGW}, {sT2} offen lds")
        e("s_mov_b64 exec, -1")
        e(f"s_mul_i32 {sT0}, {sJ}, 144")
        e(f"s_and_b32 {sWIN}, {sT0}, 0xffffff80")
        e(f"s_mov_b32 {sONES}, 0x3f803f80")
        e(f"s_mov_b32 {sHI}, 0xffff0000")
        e(f"s_and_b32 {sWODD}, {sWV}, 1")
        e(f"s_mul_i32 {sB0}, {sWV}, {16 * 1152}")
        e(f"s_mul_i32 {sB1}, {sWV}, {16 * 3456}")
        e(f"s_mul_i32 {sT0}, {sJ}, 1152")
        e(f"s_mul_i32 {sB2}, {sWV}, {16 * 9216}")
        e(f"s_add_u32 {sB2}, {sB2}, {sT0}")
        e(f"s_mul_i32 {sB5}, {sWV}, {32 * 9216}")
        e(f"s_add_u32 {sB5}, {sB5}, {sT0}")
        e(f"s_mul_i32 {sT0}, {sJ}, {576 * 1152}")
        e(f"s_add_u32 {sB3}, {sT0}, {sB0}")
        e(f"s_add_u32 {sB6}, {sB3}, {sB0}")
        e(f"s_mul_i32 {sT0}, {sJ}, {72 * 1152}")
        e(f"s_mul_i32 {sT1}, {sWV}, {18 * 1152}")
        e(f"s_add_u32 {sB4}, {sT0}, {sT1}")
        e(f"s_lshl_b32 {sM0W}, {sWV}, 12")
        e(f"s_mov_b32 {sK0}, {f2u(-2.0 * 0.7978845608028654 * 1.4426950408889634)}")
        e(f"s_mov_b32 {sK1}, {f2u(-2.0 * 0.7978845608028654 * 1.4426950408889634 * 0.044715)}")
        e(f"v_lshrrev_b32 v1, 4, {v(vL)}")
        e(f"v_and_b32 v2, 15, {v(vL)}")
        e(f"v_lshlrev_b32 v3, 1, v1")
        e(f"v_xor_b32 v3, v3, v2")
        e(f"v_lshlrev_b32 v3, 4, v3")
        e(f"v_xor_b32 v4, 128, v3")
        for o, stride in ((0, 1152), (2, 3456)):
            e(f"v_mul_u32_u24 v5, {stride}, v1")
            e(f"v_add_u32 {v(vDF + o)}, v5, v3")
            e(f"v_add_u32 {v(vDF + o + 1)}, v5, v4")

    def prologue2(self):
        k = self.k
        e = k.e
        e(f"v_lshrrev_b32 v1, 4, {v(vL)}")
        e(f"v_and_b32 v2, 15, {v(vL)}")
        e(f"v_lshrrev_b32 v3, 2, v2")
        e(f"v_and_b32 v4, 3, {v(vL)}")
        e(f"v_and_b32 v5, 1, v1")
        e(f"v_lshlrev_b32 v5, 3, v5")
        e(f"v_lshl_or_b32 v5, v3, 1, v5")
        e(f"v_lshlrev_b32 v6, 11, v1")
        e(f"v_lshl_add_u32 v6, v3, 8, v6")
        e(f"v_and_b32 v7, 1, v4")
        e(f"v_lshl_add_u32 v6, v7, 3, v6")
        e(f"v_lshrrev_b32 v7, 1, v4")
        e(f"v_add_u32 v7, {sJ}, v7")
        for cb in range(5):
            t = v(vT)
            e(f"v_add_u32 {t}, {2 * cb}, v7")
            e(f"v_xor_b32 {t}, {t}, v5")
            e(f"v_lshl_add_u32 {v(vTRb + cb)}, {t}, 4, v6")
        e(f"s_lshl_b32 {sT0}, {sWV}, 4")
        e(f"v_add_u32 v5, {sT0}, v2")
        e(f"v_mul_u32_u24 v5, {PITCH}, v5")
        e(f"v_add_u32 v5, {XH}, v5")
        e(f"v_lshlrev_b32 v6, 2, v1")
        e(f"v_cmp_gt_u32 vcc, 2, v1")
        for p in range(10):
            c0 = 16 * (p >> 1) + 2 * (p & 1)
            t, u = v(vT), v(vT + 1)
            e(f"v_add_u32 {t}, {c0}, v6")
            e(f"v_mul_u32_u24 {u}, 3641, {t}")
            e(f"v_lshrrev_b32 {u}, 16, {u}")
            e(f"v_mul_u32_u24 {u}, 12, {u}")
            e(f"v_lshl_add_u32 {t}, {t}, 1, {u}")
            if p >= 8:
                e(f"v_mov_b32 {u}, {192 + 4 * (p & 1)}")
                e(f"v_cndmask_b32 {t}, {u}, {t}, vcc")
            e(f"v_add_u32 {v(vKV + p)}, v5, {t}")
        e(f"s_mul_i32 {sT0}, {sJ}, 9")
        e(f"v_and_b32 v5, 1, v1")
        e(f"v_lshlrev_b32 v5, 1, v5")
        e(f"v_lshrrev_b32 v6, 1, v1")
        e(f"v_add_u32 v5, v5, v6")
        e(f"v_add_u32 v5, {sT0}, v5")
        e(f"s_mul_i32 {sT1}, {sWV}, 18432")
        e(f"s_add_u32 {sT1}, {sT1}, {XH}")
        e(f"v_mul_u32_u24 v6, 1152, v2")
        e(f"v_add_u32 v6, {sT1}, v6")
        e(f"v_lshrrev_b32 v7, 1, v2")
        self.xres_addr = []
        for p in range(3):
            t, u = v(vT + 2 + p), v(vT)
            if p == 0:
                e(f"v_mov_b32 {u}, v5")
            elif p == 1:
                e(f"v_add_u32 {u}, 4, v5")
            else:
                e(f"s_add_u32 {sT2}, {sT0}, 8")
                e(f"v_mov_b32 {u}, {sT2}")
            cp = v(vCP + p)
            e(f"v_lshrrev_b32 {cp}, 2, {u}")
            e(f"v_lshlrev_b32 {cp}, 10, {cp}")
            e(f"v_and_b32 {v(vT + 1)}, 3, {u}")
            e(f"v_lshl_add_u32 {cp}, {v(vT + 1)}, 8, {cp}")
            e(f"v_xor_b32 {u}, {u}, v7")
            e(f"v_lshl_add_u32 {t}, {u}, 4, v6")
            if p == 2:
                e(f"v_and_b32 {u}, 1, v1")
                e(f"v_lshl_add_u32 {t}, {u}, 3, {t}")
                e(f"v_lshl_add_u32 {cp}, {u}, 3, {cp}")
                e(f"v_mov_b32 {u}, 0x40000000")
                e(f"v_cndmask_b32 {cp}, {u}, {cp}, vcc")
        e(f"s_lshl_b32 {sT0}, {sI}, 2")
        e(f"s_add_u32 {sT0}, {sT0}, {sWV}")
        e(f"s_mul_i32 {sT1}, {sT0}, 18432")
        e(f"s_add_u32 {sT1}, {sT1}, {X1_OFF}")
        e(f"v_lshl_add_u32 {v(vTX1)}, v2, 4, {sT1}")
        e(f"s_lshr_b32 {sT1}, {sJ}, 2")
        e(f"s_add_u32 {sT1}, {sT1}, 1")
        e(f"s_sub_u32 {sT2}, 0, {sT1}")
        e(f"s_bitcmp1_b32 {sJ}, 1")
        e(f"s_cselect_b32 {sT1}, {sT2}, {sT1}")
        e(f"s_lshl_b32 {sT0}, {sT0}, 4")
        e(f"s_add_u32 {sT0}, {sT0}, {sT1}")
        e(f"v_add_u32 {v(vTSH)}, {sT0}, v2")
        e(f"v_xor_b32 v5, v1, v7")
        e(f"v_lshl_add_u32 {v(vT + 6)}, v5, 4, v6")
        e(f"v_xor_b32 v5, 4, v5")
        e(f"v_lshl_add_u32 {v(vT + 7)}, v5, 4, v6")

    def leader_nonce(self):
        k = self.k
        e = k.e
        L = k.label("nolead2")
        Lp = k.label("cand")
        e(f"s_or_b32 {sT0}, s2, {sWV}")
        e(f"s_cmp_lg_u32 {sT0}, 0")
        e(f"s_cbranch_scc1 {L}")
        e(f"s_mov_b32 {sT0}, 0")
        e(f"{Lp}:")
        e(f"s_add_u32 {sT0}, {sT0}, 1")
        e(f"s_mov_b64 {sEX}, 0")
        for r in range(16):
            e(f"v_cmp_eq_u32 vcc, {sT0}, {v(vACC + r)}")
            e("s_nop 0")
            e(f"s_or_b64 {sEX}, {sEX}, vcc")
        e(f"s_cmp_ge_u32 {sT0}, 1100")
        e(f"s_cbranch_scc1 {Lp}_x")
        e(f"s_cmp_lg_u64 {sEX}, 0")
        e(f"s_cbranch_scc1 {Lp}")
        e(f"{Lp}_x:")
        e(f"v_mov_b32 v1, {sT0}")
        e("v_mov_b32 v2, 0")
        e("s_mov_b64 exec, 1")
        e(f"buffer_store_dword v1, v2, {sDBG}, 0 offen sc0 sc1")
        e("s_mov_b64 exec, -1")
        e(f"{L}:")

    def allreduce_g(self, regs, tmps):
        k = self.k
        for ins in ("v_permlane16_swap_b32", "v_permlane32_swap_b32"):
            for r, t in zip(regs, tmps):
                k.e(f"v_mov_b32 {v(t)}, {v(r)}")
            for r, t in zip(regs, tmps):
                k.e(f"{ins} {v(r)}, {v(t)}")
            for r, t in zip(regs, tmps):
                k.e(f"v_add_f32 {v(r)}, {v(r)}, {v(t)}")

    def ln_finish(self, s, q, t):
        k = self.k
        e = k.e
        e(f"v_mul_f32 {v(s)}, {f2u(1.0 / 576)}, {v(s)}")
        e(f"v_mul_f32 {v(q)}, {f2u(1.0 / 576)}, {v(q)}")
        e(f"v_fma_f32 {v(q)}, -{v(s)}, {v(s)}, {v(q)}")
        e(f"v_max_f32 {v(q)}, 0, {v(q)}")
        e(f"v_add_f32 {v(q)}, {f2u(1e-5)}, {v(q)}")
        e(f"v_rsq_f32 {v(t)}, {v(q)}")
        e(f"v_mul_f32 {v(t + 2)}, -{v(s)}, {v(t)}")
        e(f"v_mov_b32 {v(t + 1)}, {v(t)}")
        e(f"v_mov_b32 {v(t + 3)}, {v(t + 2)}")

    def ln_norm(self, src, dst, cst, tmp):
        k = self.k
        for r in range(4):
            k.e(f"v_lshlrev_b32 {v(tmp + 2 * r)}, 16, {v(src + r)}")
            k.e(f"v_and_b32 {v(tmp + 2 * r + 1)}, {sHI}, {v(src + r)}")
        for r in range(4):
            k.e(f"v_pk_fma_f32 {v(tmp + 2 * r, 2)}, {v(tmp + 2 * r, 2)}, {v(cst, 2)}, {v(cst + 2, 2)}")
        for r in range(4):
            k.e(f"v_cvt_pk_bf16_f32 {v(dst + r)}, {v(tmp + 2 * r)}, {v(tmp + 2 * r + 1)}")

    def gelu_ops(self, xs, ts, cden):
        L = []
        for x, t in zip(xs, ts):
            L.append(f"v_mul_f32 {v(t)}, {v(x)}, {v(x)}")
        for x, t in zip(xs, ts):
            L.append(f"v_fma_f32 {v(t)}, {v(t)}, {sK1}, {v(vK0)}")
        for x, t in zip(xs, ts):
            L.append(f"v_mul_f32 {v(t)}, {v(t)}, {v(x)}")
        for x, t in zip(xs, ts):
            L.append(f"v_exp_f32 {v(t)}, {v(t)}")
        for x, t in zip(xs, ts):
            if cden is None:
                L.append(f"v_add_f32 {v(t)}, 1.0, {v(t)}")
            else:
                L.append(f"v_fma_f32 {v(t)}, {v(t)}, {cden}, {cden}")
        for x, t in zip(xs, ts):
            L.append(f"v_rcp_f32 {v(t)}, {v(t)}")
        for x, t in zip(xs, ts):
            L.append(f"v_mul_f32 {v(t)}, {v(t)}, {v(x)}")
        return L

    def front_segment(self, s0, B, bwait=None, fill=None):
        k = self.k
        jobs = [(ks, cb) for ks in range(18) for cb in range(5)]
        lead = self.lead16
        toks = {}
        pend = []

        def reads(u):
            ks, cb = jobs[u]
            st = s0 + ks // 2
            if cb == 0 and ks % 2 == 0:
                cl = self.enter(st)
                for c in range(5):
                    k.e(f"v_add_u32 {v(vTRc + c)}, {self.slot_off(st)}, {v(vTRb + c)}")
                pend.extend(cl)
                if fill and (ks // 2) in fill:
                    pend.extend(fill[ks // 2])
            buf = vW + 4 * (u % 6)
            off = (ks & 1) * 8192
            k.ds(f"ds_read_b64_tr_b16 {v(buf, 2)}, {v(vTRc + cb)} offset:{off}")
            toks[u] = k.ds(f"ds_read_b64_tr_b16 {v(buf + 2, 2)}, {v(vTRc + cb)} offset:{off + 1024}")
            self.last_read_tok[st] = toks[u]

        for u in range(min(lead, len(jobs))):
            reads(u)
        for u, (ks, cb) in enumerate(jobs):
            if u + lead < len(jobs):
                reads(u + lead)
            if pend:
                pend.pop(0)()
            k.wait(lg=toks[u], vm=(bwait[ks] if (bwait and cb == 0) else None))
            buf = vW + 4 * (u % 6)
            acc = v(vACC + 4 * cb, 4)
            k.e(f"v_mfma_f32_16x16x32_bf16 {acc}, {v(buf, 4)}, {v(B + 4 * ks, 4)}, {acc if ks else 0}")
        while pend:
            pend.pop(0)()

    def merge_pairs(self, P):
        k = self.k
        for b in (0, 4):
            k.e(f"v_permlane16_swap_b32 {v(P + b)}, {v(P + b + 2)}")
            k.e(f"v_permlane16_swap_b32 {v(P + b + 1)}, {v(P + b + 3)}")

    def pub_stores(self, P, tokreg):
        k = self.k
        t = vT
        for p in range(3):
            k.e(f"v_add_u32 {v(t + p)}, {v(vCP + p)}, {v(tokreg)}")
        k.vmem(f"buffer_store_dwordx4 {v(P, 4)}, {v(t)}, {sWS}, 0 offen sc0 sc1")
        k.vmem(f"buffer_store_dwordx4 {v(P + 4, 4)}, {v(t + 1)}, {sWS}, 0 offen sc0 sc1")
        return k.vmem(f"buffer_store_dwordx2 {v(P + 8, 2)}, {v(t + 2)}, {sWS}, 0 offen sc0 sc1")

    def kv_epilogue(self, base):
        k = self.k
        P = vW
        for p in range(10):
            k.e(f"v_cvt_pk_bf16_f32 {v(P + p)}, {v(vACC + 2 * p)}, {v(vACC + 2 * p + 1)}")
        for p in range(10):
            k.ds(f"ds_write_b32 {v(vKV + p)}, {v(P + p)} offset:{base}")

    def front(self):
        k = self.k
        e = k.e
        segs = {}
        for name, srd, stride, sbase, col in (("h", sW1, 1152, sB0, 0), ("k", sQKV, 3456, sB1, 1152),
                                              ("v", sQKV, 3456, sB1, 2304), ("x1", sW2, 1152, sB0, 0),
                                              ("q", sQKV, 3456, sB1, 0)):
            segs[name] = len(self.stages)
            for st in range(9):
                self.add_stage(self.dma_front(srd, stride, sbase, col, st))
        self.mlp_stages()
        for s in range(self.LA):
            for f in self.dma_closures(s):
                f()
        self.prologue2()
        e(f"v_mov_b32 {v(vK0)}, {sK0}")
        k.wait(vm=self.xtok)
        self.stamp("x landed")
        self.leader_nonce()
        for ks in range(18):
            k.ds(f"ds_read_b128 {v(vXR + 4 * ks, 4)}, {v(vT + 6 + (ks & 1))} offset:{128 * (ks >> 1)}")
        k.ds(f"ds_read_b128 {v(vXRES, 4)}, {v(vT + 2)}")
        k.ds(f"ds_read_b128 {v(vXRES + 4, 4)}, {v(vT + 3)}")
        k.ds(f"ds_read_b64 {v(vXRES + 8, 2)}, {v(vT + 4)}")
        k.wait(vm=self.gwtok)
        k.wait_all_lg()
        e("s_barrier")
        e(f"v_mov_b32 {v(vNON)}, 0")
        ntok = k.vmem(f"buffer_load_dword {v(vNON)}, {v(vNON)}, {sDBG}, 0 offen sc0 sc1")
        S, Q, G = vT, vT + 1, vT + 2
        ga = vT + 8
        e(f"v_lshrrev_b32 {v(ga)}, 4, {v(vL)}")
        e(f"v_lshlrev_b32 {v(ga)}, 4, {v(ga)}")
        e(f"v_add_u32 {v(ga)}, {GW}, {v(ga)}")
        gt = {}
        for ks in range(6):
            gt[ks] = k.ds(f"ds_read_b128 {v(vW + 4 * ks, 4)}, {v(ga)} offset:{64 * ks}")
        for r in (S, Q, G):
            e(f"v_mov_b32 {v(r)}, 0")
        for ks in range(18):
            for r in range(4):
                x = v(vXR + 4 * ks + r)
                e(f"v_dot2_f32_bf16 {v(S)}, {x}, {sONES}, {v(S)}")
                e(f"v_dot2_f32_bf16 {v(Q)}, {x}, {x}, {v(Q)}")
            k.wait(lg=gt[ks])
            for r in range(4):
                e(f"v_dot2_f32_bf16 {v(G)}, {v(vXR + 4 * ks + r)}, {v(vW + 4 * (ks % 6) + r)}, {v(G)}")
            if ks + 6 < 18:
                gt[ks + 6] = k.ds(f"ds_read_b128 {v(vW + 4 * (ks % 6), 4)}, {v(ga)} offset:{64 * (ks + 6)}")
        self.allreduce_g([S, Q, G], [vT + 3, vT + 4, vT + 5])
        cst = vT + 10
        self.ln_finish(S, Q, cst)
        e(f"v_min_f32 {v(G)}, {f2u(55.0)}, {v(G)}")
        e(f"v_mul_f32 {v(G)}, {f2u(1.4426950408889634)}, {v(G)}")
        e(f"v_exp_f32 {v(G)}, {v(G)}")
        e(f"v_and_b32 {v(vT + 3)}, 15, {v(vL)}")
        e(f"s_lshl_b32 {sT0}, {sWV}, 6")
        e(f"s_add_u32 {sT0}, {sT0}, {GATE}")
        e(f"v_lshl_add_u32 {v(vT + 3)}, {v(vT + 3)}, 2, {sT0}")
        k.ds(f"ds_write_b32 {v(vT + 3)}, {v(G)}")
        for ks in range(18):
            self.ln_norm(vXR + 4 * ks, vB2 + 4 * ks, cst, vACC + 8 * (ks & 1))
        self.stamp("ln1")
        self.front_segment(segs["h"], vB2)
        ts = list(range(vB2, vB2 + 20))
        for t in self.gelu_ops(list(range(vACC, vACC + 20)), ts, None):
            e(t)
        P = vW
        for p in range(10):
            e(f"v_cvt_pk_bf16_f32 {v(P + p)}, {v(ts[2 * p])}, {v(ts[2 * p + 1])}")
        self.merge_pairs(P)
        e(f"v_cmp_gt_u32 vcc, 2048, {v(vTSH)}")
        for p in range(10):
            e(f"v_cndmask_b32 {v(P + p)}, 0, {v(P + p)}, vcc")
        e(f"v_and_b32 {v(vTSH)}, 2047, {v(vTSH)}")
        e(f"v_lshrrev_b32 {v(vT + 3)}, 4, {v(vTSH)}")
        e(f"v_mul_u32_u24 {v(vT + 3)}, 18432, {v(vT + 3)}")
        e(f"v_and_b32 {v(vTSH)}, 15, {v(vTSH)}")
        e(f"v_lshl_add_u32 {v(vTSH)}, {v(vTSH)}, 4, {v(vT + 3)}")
        htok = self.pub_stores(P, vTSH)
        self.stamp("h")
        sflag = segs["k"] + 3
        self.pre.setdefault(sflag, []).append(lambda: k.wait(vm=htok))
        self.post.setdefault(sflag, []).append(lambda: (self.get_nonce(ntok), self.flag_store(F_H)))
        e("s_nop 1")
        self.front_segment(segs["k"], vXR)
        self.kv_epilogue(KB_ + 16 * PITCH)
        self.stamp("k")
        self.poll("h")
        shtok = {}
        fill = {}
        shb = vT + 17

        def mk_sh(ks):
            def f():
                shtok[ks] = k.vmem(f"buffer_load_dwordx4 {v(vB2 + 4 * ks, 4)}, {v(shb)}, {sWS}, {sT2} offen "
                                   f"offset:{1024 * (ks % 4)} sc0 sc1")
            return f

        def mk_base(q):
            def f():
                e(f"s_lshl_b32 {sT2}, {sI}, 2")
                e(f"s_add_u32 {sT2}, {sT2}, {sWV}")
                e(f"s_mul_i32 {sT2}, {sT2}, 18432")
                e(f"s_add_u32 {sT2}, {sT2}, {SH_OFF + 4096 * q}")
            return f
        e(f"v_lshlrev_b32 {v(shb)}, 4, {v(vL)}")
        for st in range(9):
            fill[st] = []
            for ks in (2 * st, 2 * st + 1):
                if ks % 4 == 0 or ks % 2 == 0:
                    fill[st].append(mk_base(ks // 4))
                fill[st].append(mk_sh(ks))
        self.front_segment(segs["v"], vXR, fill=fill)
        self.kv_epilogue(VB_ + 16 * PITCH)
        self.stamp("v")
        hal = {}

        def halo_read():
            e(f"s_mul_i32 {sT0}, {sWV}, 104")
            e(f"v_add_u32 {v(vT + 3)}, {sT0}, {v(vL)}")
            for n in range(2):
                u = v(vT + 4 + n)
                e(f"v_add_u32 {u}, {64 * n}, {v(vT + 3)}")
                e(f"v_lshlrev_b32 {u}, 4, {u}")
                e(f"v_cmp_le_u32 vcc, 3328, {u}")
                e(f"v_mov_b32 {v(vT + 6)}, 0")
                e(f"v_mov_b32 {v(vT + 7)}, {VB_ - 3328}")
                e(f"v_cndmask_b32 {v(vT + 6)}, {v(vT + 6)}, {v(vT + 7)}, vcc")
                e(f"v_add_u32 {v(vT + 6)}, {v(vT + 6)}, {u}")
                e(f"v_add_u32 {v(vT + 6)}, {XH + 64 * PITCH}, {v(vT + 6)}")
                hal[n] = k.ds(f"ds_read_b128 {v(vT + 8 + 4 * n, 4)}, {v(vT + 6)}")
            e(f"s_lshl_b32 {sT0}, {sI}, 3")
            e(f"s_add_u32 {sT0}, {sT0}, {sJ}")
            e(f"s_mul_i32 {sT0}, {sT0}, {KVH_SZ}")
            e(f"s_add_u32 {sT0}, {sT0}, {KVH_OFF}")
            k.wait(lg=hal[1])
            k.vmem(f"buffer_store_dwordx4 {v(vT + 8, 4)}, {v(vT + 4)}, {sWS}, {sT0} offen sc0 sc1")
            self.set_exec(0xffffffffff)
            hal["tok"] = k.vmem(f"buffer_store_dwordx4 {v(vT + 12, 4)}, {v(vT + 5)}, {sWS}, {sT0} offen sc0 sc1")
            e("s_mov_b64 exec, -1")
        self.pre.setdefault(segs["x1"], []).append(lambda: k.wait_all_lg())
        self.post.setdefault(segs["x1"] + 1, []).append(halo_read)
        self.pre.setdefault(segs["x1"] + 5, []).append(lambda: k.wait(vm=hal["tok"]))
        self.post.setdefault(segs["x1"] + 5, []).append(lambda: self.flag_store(F_KV))
        self.front_segment(segs["x1"], vB2, bwait=shtok)
        for b in range(10):
            x = v(vXRES + b)
            e(f"v_lshlrev_b32 {v(vB2 + 2 * b)}, 16, {x}")
            e(f"v_and_b32 {v(vB2 + 2 * b + 1)}, {sHI}, {x}")
        for b in (0, 8):
            for r in range(4):
                e(f"v_permlane16_swap_b32 {v(vACC + b + r)}, {v(vACC + b + 4 + r)}")
        for r in range(20):
            e(f"v_add_f32 {v(vACC + r)}, {v(vACC + r)}, {v(vB2 + r)}")
        P = vW
        for p in range(10):
            e(f"v_cvt_pk_bf16_f32 {v(P + p)}, {v(vACC + 2 * p)}, {v(vACC + 2 * p + 1)}")
        x1tok = self.pub_stores(P, vTX1)
        self.stamp("x1")
        sflag = segs["q"] + 3
        self.pre.setdefault(sflag, []).append(lambda: k.wait(vm=x1tok))
        self.post.setdefault(sflag, []).append(lambda: self.flag_store(F_X1))
        self.mlp_dma_regs()
        self.front_segment(segs["q"], vXR)
        self.kv_epilogue(QB_)
        self.stamp("q")

    def middle(self):
        k = self.k
        e = k.e
        self.poll("x1kv")
        k.wait_all_lg()
        e("s_barrier")
        self.stamp("x1 flags")
        e(f"s_add_u32 {sT0}, {sI}, 31")
        e(f"s_and_b32 {sT0}, {sT0}, 31")
        e(f"s_lshl_b32 {sT0}, {sT0}, 3")
        e(f"s_add_u32 {sT0}, {sT0}, {sJ}")
        e(f"s_mul_i32 {sT0}, {sT0}, {KVH_SZ}")
        e(f"s_add_u32 {sT0}, {sT0}, {KVH_OFF}")
        e(f"s_cmp_eq_u32 {sI}, 0")
        e(f"s_cselect_b32 {sT0}, 0x40000000, {sT0}")
        e(f"s_mul_i32 {sT1}, {sWV}, 104")
        e(f"v_add_u32 {v(vT + 3)}, {sT1}, {v(vL)}")
        ht = {}
        for n in range(2):
            u = v(vT + 4 + n)
            e(f"v_add_u32 {u}, {64 * n}, {v(vT + 3)}")
            e(f"v_lshlrev_b32 {u}, 4, {u}")
            e(f"v_add_u32 {v(vT + 6 + n)}, {sT0}, {u}")
        for n in range(2):
            ht[n] = k.vmem(f"buffer_load_dwordx4 {v(vT + 8 + 4 * n, 4)}, {v(vT + 6 + n)}, {sWS}, 0 offen sc0 sc1")
        e(f"s_lshl_b32 {sT2}, {sI}, 2")
        e(f"s_add_u32 {sT2}, {sT2}, {sWV}")
        e(f"s_mul_i32 {sT2}, {sT2}, 18432")
        e(f"s_add_u32 {sT2}, {sT2}, {X1_OFF}")
        e(f"v_lshlrev_b32 {v(vT + 16)}, 4, {v(vL)}")
        xt = {}
        for ks in range(18):
            if ks and ks % 4 == 0:
                e(f"s_add_u32 {sT2}, {sT2}, 4096")
            xt[ks] = k.vmem(f"buffer_load_dwordx4 {v(vB2 + 4 * ks, 4)}, {v(vT + 16)}, {sWS}, {sT2} offen "
                            f"offset:{1024 * (ks % 4)} sc0 sc1")
        for n in range(2):
            u = v(vT + 4 + n)
            e(f"v_cmp_le_u32 vcc, 3328, {u}")
            e(f"v_mov_b32 {v(vT + 6)}, 0")
            e(f"v_mov_b32 {v(vT + 7)}, {VB_ - 3328}")
            e(f"v_cndmask_b32 {v(vT + 6)}, {v(vT + 6)}, {v(vT + 7)}, vcc")
            e(f"v_add_u32 {u}, {v(vT + 6)}, {u}")
            e(f"v_add_u32 {u}, {XH}, {u}")
        AT = vT
        e(f"s_mul_i32 {sT0}, {sWV}, 48")
        e(f"s_add_u32 {sT0}, {sT0}, {XH}")
        e(f"v_mul_u32_u24 {v(AT)}, {PITCH}, {v(vL)}")
        e(f"v_add_u32 {v(AT)}, {sT0}, {v(AT)}")
        Qr = 8
        KR = [20, 32, 44]
        LG = 56
        O = 152
        TM = 172
        for c in range(3):
            k.ds(f"ds_read_b128 {v(Qr + 4 * c, 4)}, {v(AT)} offset:{QB_ + 16 * c}")
        k.wait(vm=ht[0])
        k.ds(f"ds_write_b128 {v(vT + 4)}, {v(vT + 8, 4)}")
        k.wait(vm=ht[1])
        self.set_exec(0xffffffffff)
        k.ds(f"ds_write_b128 {v(vT + 5)}, {v(vT + 12, 4)}")
        e("s_mov_b64 exec, -1")
        k.wait_all_lg()
        e("s_barrier")
        self.stamp("halo")
        rt = {}

        def row(base, w_, buf):
            t = None
            for c in range(3):
                t = k.ds(f"ds_read_b128 {v(buf + 4 * c, 4)}, {v(AT)} offset:{base + (16 - 2 * w_) * PITCH + 16 * c}")
            return t
        seq = [(KB_, w_) for w_ in range(8)] + [(VB_, w_) for w_ in range(8)]
        for n in range(3):
            rt[n] = row(seq[n][0], seq[n][1], KR[n % 3])
        e(f"s_lshl_b32 {sT0}, {sI}, 6")
        e(f"v_add_u32 {v(vT + 1)}, {sT0}, {v(vL)}")
        e(f"v_lshlrev_b32 {v(vT + 2)}, 2, {v(vL)}")
        e(f"v_add_u32 {v(vT + 2)}, {GATE}, {v(vT + 2)}")
        gtok = k.ds(f"ds_read_b32 {v(vT + 3)}, {v(vT + 2)}")
        e(f"v_mov_b32 {v(vT + 4)}, {f2u(-3.0e38)}")
        for n in range(8):
            k.wait(lg=rt[n])
            b = KR[n % 3]
            e(f"v_dot2_f32_bf16 {v(LG + n)}, {v(Qr)}, {v(b)}, 0")
            for c in range(1, 9):
                e(f"v_dot2_f32_bf16 {v(LG + n)}, {v(Qr + c)}, {v(b + c)}, {v(LG + n)}")
            rt[n + 3] = row(seq[n + 3][0], seq[n + 3][1], b)
        for n in range(1, 8):
            e(f"v_cmp_gt_i32 vcc, {2 * n}, {v(vT + 1)}")
            e(f"v_cndmask_b32 {v(LG + n)}, {v(LG + n)}, {v(vT + 4)}, vcc")
        M = vT + 5
        e(f"v_max3_f32 {v(M)}, {v(LG)}, {v(LG + 1)}, {v(LG + 2)}")
        e(f"v_max3_f32 {v(M)}, {v(M)}, {v(LG + 3)}, {v(LG + 4)}")
        e(f"v_max3_f32 {v(M)}, {v(M)}, {v(LG + 5)}, {v(LG + 6)}")
        e(f"v_max_f32 {v(M)}, {v(M)}, {v(LG + 7)}")
        sc = 18 ** -0.5 * 1.4426950408889634
        e(f"s_mov_b32 {sT0}, {f2u(sc)}")
        for n in range(8):
            e(f"v_sub_f32 {v(LG + n)}, {v(LG + n)}, {v(M)}")
        for n in range(8):
            e(f"v_mul_f32 {v(LG + n)}, {sT0}, {v(LG + n)}")
        for n in range(8):
            e(f"v_exp_f32 {v(LG + n)}, {v(LG + n)}")
        SUM = vT + 6
        e(f"v_add_f32 {v(SUM)}, {v(LG)}, {v(LG + 1)}")
        for n in range(2, 8):
            e(f"v_add_f32 {v(SUM)}, {v(SUM)}, {v(LG + n)}")
        k.wait(lg=gtok)
        e(f"v_add_f32 {v(vT + 7)}, 1.0, {v(vT + 3)}")
        e(f"v_mul_f32 {v(SUM)}, {v(SUM)}, {v(vT + 7)}")
        e(f"v_rcp_f32 {v(SUM)}, {v(SUM)}")
        e(f"v_mul_f32 {v(SUM)}, {v(SUM)}, {v(vT + 3)}")
        for n in range(8):
            k.wait(lg=rt[8 + n])
            b = KR[(8 + n) % 3]
            for c in range(9):
                e(f"v_lshlrev_b32 {v(TM + 2 * c)}, 16, {v(b + c)}")
                e(f"v_and_b32 {v(TM + 2 * c + 1)}, {sHI}, {v(b + c)}")
            if 8 + n + 3 < 16:
                rt[8 + n + 3] = row(seq[8 + n + 3][0], seq[8 + n + 3][1], b)
            pr = LG + (n & ~1)
            sel = "op_sel:[0,1,0] op_sel_hi:[1,1,1]" if n & 1 else "op_sel:[0,0,0] op_sel_hi:[1,0,1]"
            for c in range(9):
                o = v(O + 2 * c, 2)
                if n == 0:
                    e(f"v_pk_mul_f32 {o}, {v(TM + 2 * c, 2)}, {v(pr, 2)} op_sel:[0,0] op_sel_hi:[1,0]")
                else:
                    e(f"v_pk_fma_f32 {o}, {v(TM + 2 * c, 2)}, {v(pr, 2)}, {o} {sel}")
        for c in range(18):
            e(f"v_mul_f32 {v(O + c)}, {v(O + c)}, {v(SUM)}")
        PK = TM
        place = [0, 1, 4, 5, 2, 3, 6, 7, 8]
        for c in range(9):
            e(f"v_cvt_pk_bf16_f32 {v(PK + place[c])}, {v(O + 2 * c)}, {v(O + 2 * c + 1)}")
        oa = vT + 8
        e(f"v_lshrrev_b32 {v(oa)}, 5, {v(vL)}")
        e(f"v_mul_u32_u24 {v(oa)}, 5120, {v(oa)}")
        e(f"v_and_b32 {v(oa + 1)}, 31, {v(vL)}")
        e(f"v_lshl_add_u32 {v(oa)}, {v(oa + 1)}, 4, {v(oa)}")
        e(f"v_add_u32 {v(oa)}, {OST}, {v(oa)}")
        e(f"s_lshl_b32 {sT0}, {sWV}, 10")
        e(f"v_add_u32 {v(oa + 1)}, {sT0}, {v(oa)}")
        e(f"s_lshl_b32 {sT0}, {sWV}, 2")
        e(f"v_add_u32 {v(oa + 2)}, {sT0}, {v(oa)}")
        k.ds(f"ds_write_b128 {v(oa + 1)}, {v(PK, 4)}")
        k.ds(f"ds_write_b128 {v(oa + 1)}, {v(PK + 4, 4)} offset:512")
        k.ds(f"ds_write_b32 {v(oa + 2)}, {v(PK + 8)} offset:4096")
        self.stamp("attn")
        S, Q = vT, vT + 1
        e(f"v_mov_b32 {v(S)}, 0")
        e(f"v_mov_b32 {v(Q)}, 0")
        k.wait_all_lg()
        e("s_barrier")
        e(f"s_mul_i32 {sT0}, {sWODD}, 5120")
        e(f"s_add_u32 {sT0}, {sT0}, {OST}")
        e(f"s_sub_u32 {sT1}, {2 * OST + 5120}, {sT0}")
        e(f"v_lshl_add_u32 {v(vT + 2)}, {v(vL)}, 4, {sT0}")
        e(f"v_lshl_add_u32 {v(vT + 3)}, {v(vL)}, 4, {sT1}")
        for r in range(4):
            e(f"v_mov_b32 {v(mO + 16 + r)}, 0")
            e(f"v_mov_b32 {v(mO + 36 + r)}, 0")
        for s_ in range(2):
            for ks in range(4):
                k.ds(f"ds_read_b128 {v(mO + 20 * s_ + 4 * ks, 4)}, {v(vT + 2 + s_)} offset:{1024 * ks}")
        self.set_exec(0xffffffff)
        for s_ in range(2):
            k.ds(f"ds_read_b128 {v(mO + 20 * s_ + 16, 4)}, {v(vT + 2 + s_)} offset:4096")
        e("s_mov_b64 exec, -1")
        e(f"v_and_b32 {v(vT + 4)}, 31, {v(vL)}")
        e(f"v_lshlrev_b32 {v(vT + 4)}, 2, {v(vT + 4)}")
        e(f"s_lshl_b32 {sT0}, {sWODD}, 7")
        e(f"s_add_u32 {sT0}, {sT0}, {GATE}")
        e(f"s_sub_u32 {sT1}, {2 * GATE + 128}, {sT0}")
        e(f"v_add_u32 {v(vT + 5)}, {sT0}, {v(vT + 4)}")
        e(f"v_add_u32 {v(vT + 4)}, {sT1}, {v(vT + 4)}")
        k.ds(f"ds_read_b32 {v(mC)}, {v(vT + 5)}")
        k.ds(f"ds_read_b32 {v(mC + 1)}, {v(vT + 4)}")
        for ks in range(18):
            k.wait(vm=xt[ks])
            for r in range(4):
                x = v(vB2 + 4 * ks + r)
                e(f"v_dot2_f32_bf16 {v(S)}, {x}, {sONES}, {v(S)}")
                e(f"v_dot2_f32_bf16 {v(Q)}, {x}, {x}, {v(Q)}")
        self.stamp("x1 landed")
        self.allreduce_g([S, Q], [vT + 2, vT + 3])
        cst = vT + 10
        self.ln_finish(S, Q, cst)
        la = vT + 6
        e(f"v_lshrrev_b32 {v(la)}, 5, {v(vL)}")
        e(f"v_lshlrev_b32 {v(la)}, 10, {v(la)}")
        e(f"v_bfe_u32 {v(la + 1)}, {v(vL)}, 4, 1")
        e(f"v_lshl_add_u32 {v(la)}, {v(la + 1)}, 9, {v(la)}")
        e(f"v_and_b32 {v(la + 1)}, 15, {v(vL)}")
        e(f"v_lshl_add_u32 {v(la)}, {v(la + 1)}, 4, {v(la)}")
        e(f"s_lshr_b32 {sT0}, {sWV}, 1")
        e(f"s_mul_i32 {sT0}, {sT0}, 36864")
        e(f"s_lshl_b32 {sT1}, {sWODD}, 8")
        e(f"s_add_u32 {sT0}, {sT0}, {sT1}")
        e(f"s_add_u32 {sT0}, {sT0}, {XH}")
        e(f"v_add_u32 {v(la)}, {sT0}, {v(la)}")
        k.wait_all_lg()
        e(f"v_add_f32 {v(mC)}, 1.0, {v(mC)}")
        e(f"v_add_f32 {v(mC + 1)}, 1.0, {v(mC + 1)}")
        e("s_barrier")
        for ks in range(18):
            self.ln_norm(vB2 + 4 * ks, vB2 + 4 * ks, cst, 8 + 8 * (ks & 1))
            k.ds(f"ds_write_b128 {v(la)}, {v(vB2 + 4 * ks, 4)} offset:{2048 * ks}")
        self.mlp_addresses()
        k.wait_all_lg()
        e("s_barrier")
        self.stamp("ln2")

    def mlp_addresses(self):
        k = self.k
        e = k.e
        e(f"v_bfe_u32 v1, {v(vL)}, 2, 2")
        e(f"v_and_b32 v2, 3, {v(vL)}")
        e(f"v_bfe_u32 v3, {v(vL)}, 4, 1")
        e(f"v_lshrrev_b32 v4, 5, {v(vL)}")
        e(f"v_lshlrev_b32 v5, 4, {v(vL)}")
        t0, t1, t2, t3 = (v(vT + i) for i in range(4))
        e(f"v_lshlrev_b32 {t0}, 5, v3")
        e(f"v_lshl_add_u32 v6, v2, 3, {t0}")
        e(f"v_and_b32 {t1}, 1, v2")
        e(f"v_lshl_add_u32 {t0}, {t1}, 4, {t0}")
        e(f"v_lshrrev_b32 {t1}, 1, v2")
        e(f"v_lshl_add_u32 v7, {t1}, 3, {t0}")
        e(f"v_xor_b32 {t0}, {sWV}, v1")
        e(f"v_lshlrev_b32 {t0}, 6, {t0}")
        e(f"v_lshl_add_u32 {t0}, v1, 8, {t0}")
        e(f"v_lshl_add_u32 {t1}, v4, 11, {t0}")
        e(f"v_add_u32 {v(mTR3)}, {t1}, v6")
        e(f"v_lshl_add_u32 {t1}, v4, 10, {t0}")
        e(f"v_add_u32 {v(mTR4)}, {t1}, v7")
        e(f"v_and_b32 {t1}, 1, v1")
        e(f"v_xor_b32 {t1}, {sWV}, {t1}")
        e(f"v_lshlrev_b32 {t1}, 6, {t1}")
        e(f"v_lshl_add_u32 {t1}, v1, 8, {t1}")
        e(f"v_add_u32 {t1}, {t1}, v7")
        e(f"v_add_u32 {v(mTRE)}, {EBUF}, {t1}")
        e(f"s_lshr_b32 {sT0}, {sWV}, 1")
        e(f"v_lshrrev_b32 {t1}, 1, v1")
        e(f"v_xor_b32 {t1}, {sT0}, {t1}")
        e(f"v_lshlrev_b32 {t1}, 6, {t1}")
        e(f"v_lshl_add_u32 {t1}, v1, 7, {t1}")
        e(f"v_lshl_add_u32 {t2}, v4, 10, {t1}")
        e(f"v_add_u32 {v(mTR3h)}, {t2}, v6")
        e(f"v_lshl_add_u32 {t2}, v4, 9, {t1}")
        e(f"v_add_u32 {v(mTR4h)}, {t2}, v7")
        e(f"s_lshl_b32 {sT0}, {sT0}, 6")
        e(f"s_add_u32 {sT0}, {sT0}, {EBUF}")
        e(f"v_lshl_add_u32 {t1}, v1, 7, {sT0}")
        e(f"v_add_u32 {v(mTREh)}, {t1}, v7")
        e(f"s_mul_i32 {sT0}, {sWODD}, 36864")
        e(f"s_add_u32 {sT0}, {sT0}, {XH}")
        e(f"s_sub_u32 {sT1}, {2 * XH + 36864}, {sT0}")
        e(f"v_add_u32 {v(mXA)}, {sT0}, v5")
        e(f"v_add_u32 {v(mXB)}, {sT1}, v5")
        e(f"s_lshl_b32 {sT2}, {sWV}, 11")
        e(f"v_add_u32 {v(mHA)}, {sT2}, {v(mXA)}")
        e(f"v_add_u32 {v(mHB)}, {sT2}, {v(mXB)}")
        e(f"s_lshr_b32 {sT2}, {sWV}, 1")
        e(f"s_lshl_b32 {sT2}, {sT2}, 11")
        e(f"v_add_u32 {v(mHH)}, {sT2}, {v(mXA)}")
        e(f"s_lshl_b32 {sT0}, {sI}, 3")
        e(f"s_add_u32 {sT0}, {sT0}, {sJ}")
        e(f"s_mul_i32 {sT0}, {sT0}, {TILE}")
        e(f"s_add_u32 {sT0}, {sT0}, {PART_OFF}")
        e(f"s_add_u32 {sT1}, {sT0}, {sM0W}")
        e(f"s_lshl_b32 {sT2}, {sWODD}, 11")
        e(f"s_add_u32 {sT3}, {sT1}, {sT2}")
        e(f"v_add_u32 {v(mPA)}, {sT3}, v5")
        e(f"s_sub_u32 {sT3}, {sT1}, {sT2}")
        e(f"s_add_u32 {sT3}, {sT3}, 2048")
        e(f"v_add_u32 {v(mPB)}, {sT3}, v5")
        e(f"s_lshr_b32 {sT3}, {sWV}, 1")
        e(f"s_lshl_b32 {sT3}, {sT3}, 12")
        e(f"s_add_u32 {sT3}, {sT3}, {sT0}")
        e(f"s_add_u32 {sT3}, {sT3}, {sT2}")
        e(f"s_add_u32 {sT3}, {sT3}, {16 * 4096}")
        e(f"v_add_u32 {v(mPH)}, {sT3}, v5")

    def mlp_dma_regs(self):
        k = self.k
        e = k.e
        e(f"v_lshrrev_b32 v1, 4, {v(vL)}")
        e(f"v_and_b32 v2, 15, {v(vL)}")
        e(f"v_lshlrev_b32 v3, 2, v1")
        e(f"v_xor_b32 v3, v3, v2")
        e(f"v_lshlrev_b32 v3, 4, v3")
        for base, stride in ((mD3, 9216), (mD4, 1152)):
            e(f"v_mul_u32_u24 v4, {stride}, v1")
            e(f"v_add_u32 {v(base)}, v4, v3")
            for n in range(1, 4):
                e(f"v_add_u32 {v(base + n)}, {n * (4 * stride - 1024)}, {v(base)}")
        e(f"v_lshrrev_b32 v1, 3, {v(vL)}")
        e(f"v_and_b32 v2, 7, {v(vL)}")
        e(f"v_bfe_u32 v3, {v(vL)}, 4, 1")
        e(f"v_lshlrev_b32 v3, 2, v3")
        e(f"v_xor_b32 v3, v3, v2")
        e(f"v_lshlrev_b32 v3, 4, v3")
        for base, stride in ((mD3h, 9216), (mD4h, 1152)):
            e(f"v_mul_u32_u24 v4, {stride}, v1")
            e(f"v_add_u32 {v(base)}, v4, v3")

    def mlp_stages(self):
        jobs = []
        ks = 0
        for n in (8, 8, 8, 8, 4):
            s = self.add_stage(self.dma_half(sW3, mD3h, 9216, sB5 if n == 8 else sB2, 16 * ks * 9216, 16 * n))
            for q in range(n):
                jobs.append(dict(stage=s, first=q == 0, base=mTR3h, off=2048 * q, dt=512, p=("g3", 0), ks=ks, half=True))
                ks += 1
        for pp in range(1, 5):
            for st in range(9):
                s = self.add_stage(self.dma_full(sW3, mD3, sB2, 64 * st * 9216 + 128 + 256 * (pp - 1)))
                for q in range(4):
                    jobs.append(dict(stage=s, first=q == 0, base=mTR3, off=4096 * q, dt=1024, p=("g3", pp),
                                     ks=4 * st + q, half=False))
        for p in range(4):
            s = self.add_stage(self.dma_full(sWO, mD4, sB4, 256 * p, extra=self.dma_E(256 * p, False)))
            for q in range(4):
                jobs.append(dict(stage=s, first=q == 0, base=mTR4, off=4096 * q, dt=2048, p=("g4", p), ks=-5 + q, half=False))
            jobs.append(dict(stage=s, first=False, base=None, ereg=mTRE, off=0, dt=1024, p=("g4", p), ks=-1, half=False))
            for st in range(9):
                s = self.add_stage(self.dma_full(sW4, mD4, sB3, 64 * st * 1152 + 256 * p))
                for q in range(4):
                    jobs.append(dict(stage=s, first=q == 0, base=mTR4, off=4096 * q, dt=2048, p=("g4", p),
                                     ks=4 * st + q, half=False))
        s = self.add_stage(self.dma_half(sWO, mD4h, 1152, sB4, 1024, 64, extra=self.dma_E(1024, True)))
        for q in range(4):
            jobs.append(dict(stage=s, first=q == 0, base=mTR4h, off=2048 * q, dt=1024, p=("g4", 4), ks=-5 + q, half=True))
        jobs.append(dict(stage=s, first=False, base=None, ereg=mTREh, off=0, dt=512, p=("g4", 4), ks=-1, half=True))
        ks = 0
        for n in (8, 8, 8, 8, 4):
            s = self.add_stage(self.dma_half(sW4, mD4h, 1152, sB6 if n == 8 else sB3, 16 * ks * 1152 + 1024, 16 * n))
            for q in range(n):
                jobs.append(dict(stage=s, first=q == 0, base=mTR4h, off=2048 * q, dt=1024, p=("g4", 4), ks=ks, half=True))
                ks += 1
        self.jobs = jobs

    def gelu_frag(self, accbase, creg, haddr, off, par):
        k = self.k
        xs = list(range(accbase, accbase + 8))
        ts = list(range(mG, mG + 8))
        L = [(lambda t=t: k.e(t), 2 if t.startswith(("v_exp", "v_rcp")) else 1) for t in self.gelu_ops(xs, ts, v(creg))]
        pk = mPK + 4 * par
        for r in range(4):
            L.append((lambda r=r: k.e(f"v_cvt_pk_bf16_f32 {v(pk + r)}, {v(ts[2 * r])}, {v(ts[2 * r + 1])}"), 1))
        L.append((lambda: k.ds(f"ds_write_b128 {v(haddr)}, {v(pk, 4)} offset:{off}"), 1))
        return L

    def store_tile(self, accbase, addr, soff, par):
        k = self.k
        L = []
        toks = self.ptoks
        for b in range(2):
            st = mST + 4 * ((2 * par + b) % 4)
            for r in range(4):
                L.append((lambda r=r, st=st, b=b: k.e(
                    f"v_cvt_pk_bf16_f32 {v(st + r)}, {v(accbase + 8 * b + 2 * r)}, {v(accbase + 8 * b + 2 * r + 1)}"), 1))

            def sto(st=st, b=b):
                k.e(f"s_mov_b32 {sT2}, {soff}")
                toks.append(k.vmem(f"buffer_store_dwordx4 {v(st, 4)}, {v(addr)}, {sWS}, {sT2} offen offset:{1024 * b} sc0 sc1"))
            L.append((sto, 2))
        return L

    def mlp(self):
        k = self.k
        e = k.e
        jobs = self.jobs
        lead = self.lead32
        self.ptoks = []
        self.credit = 0.0
        toks = {}
        btoks = {}
        loaded = set()
        dmaq = []
        fillq = []
        passes = []
        for u, jb in enumerate(jobs):
            if not passes or passes[-1][0] != jb["p"]:
                passes.append([jb["p"], u, u])
            passes[-1][2] = u
        pidx = {p[0]: n for n, p in enumerate(passes)}
        pstart = {p[0]: p[1] for p in passes}
        pend_ = {p[0]: p[2] for p in passes}

        def breg(jb, s_):
            if jb["ks"] < 0:
                return v(mO + 20 * s_ + 4 * (jb["ks"] + 5), 4)
            return bfrag(36 * s_ + jb["ks"])

        def reads(u):
            jb = jobs[u]
            if jb["first"]:
                dmaq.extend(self.enter(jb["stage"]))
                e(f"v_add_u32 {v(mTRc)}, {self.slot_off(jb['stage'])}, {v(jb['base'])}")
            buf = mW + 4 * (u % 4)
            ad = v(jb["ereg"]) if jb["base"] is None else v(mTRc)
            k.ds(f"ds_read_b64_tr_b16 {v(buf, 2)}, {ad} offset:{jb['off']}")
            t = k.ds(f"ds_read_b64_tr_b16 {v(buf + 2, 2)}, {ad} offset:{jb['off'] + jb['dt']}")
            if jb["base"] is not None:
                self.last_read_tok[jb["stage"]] = t
            ph = jb["p"][0]
            if jb["ks"] >= 0:
                for s_ in ((0,) if jb["half"] else (0, 1)):
                    key = (ph, s_, jb["ks"])
                    if key not in loaded:
                        loaded.add(key)
                        t = k.ds(f"ds_read_b128 {bfrag(36 * s_ + jb['ks'])}, {v(mXA + s_)} offset:{1024 * jb['ks']}")
            toks[u] = t

        def drain(budget, u, final=False):
            used = 0
            if dmaq:
                dmaq.pop(0)()
                used += 1
            if fillq and fillq[0][2] <= u:
                self.credit += budget
            while fillq and (final or fillq[0][1] <= self.credit + 1e-6) and fillq[0][2] <= u:
                f, w_, _ = fillq.pop(0)
                f()
                self.credit -= w_

        for u in range(lead):
            reads(u)
        for u, jb in enumerate(jobs):
            p = jb["p"]
            n = pidx[p]
            par = n & 1
            if u == pstart[p] and n > 0:
                pv = passes[n - 1][0]
                pa = mACC + 32 * (1 - par)
                assert not fillq, ("epilogue not drained", p, len(fillq))
                if pv == ("g3", 0):
                    for b in range(2):
                        for it in self.gelu_frag(pa + 8 * b, mC, mHH, 1024 * b, b):
                            fillq.append((it[0], it[1], u + 2))
                    self.hold_until = u + 12
                elif pv[0] == "g3":
                    for s_ in range(2):
                        for b in range(2):
                            for it in self.gelu_frag(pa + 16 * s_ + 8 * b, mC + s_, mHA + s_,
                                                     1024 * (4 + 8 * (pv[1] - 1) + b), b):
                                fillq.append((it[0], it[1], u + 2))
                else:
                    for s_ in range(2):
                        for it in self.store_tile(pa + 16 * s_, mPA + s_, 16384 * pv[1], s_):
                            fillq.append((it[0], it[1], u + 3))
                tot = sum(x[1] for x in fillq)
                nm = (pend_[p] - u) * (1 if jb["half"] else 2)
                if pv == ("g3", 4):
                    nm = 24 * 2
                if pv == ("g3", 0):
                    fillq[:] = [(f, w_, u + 6) for f, w_, _ in fillq]
                    nm -= 12
                self.budget = max(1.0, tot / max(1, nm - 10))
                self.credit = 0.0
            if u + lead < len(jobs):
                nx = jobs[u + lead]
                if nx["p"] == ("g4", 0) and nx["ks"] == 28:
                    assert not fillq
                    k.wait_all_lg()
                if nx["p"] == ("g4", 0) and nx["ks"] == 0:
                    pass
                reads(u + lead)
            k.wait(lg=toks[u])
            buf = mW + 4 * (u % 4)
            for s_ in ((0,) if jb["half"] else (0, 1)):
                acc = v(mACC + 32 * par + 16 * s_, 16)
                k.e(f"v_mfma_f32_32x32x16_bf16 {acc}, {v(buf, 4)}, {breg(jb, s_)}, {acc if u != pstart[p] else 0}")
                drain(self.budget if hasattr(self, "budget") else 0, u)
            if u == pend_[("g3", 4)]:
                self.stamp("g3")
        drain(0, 10 ** 9, final=True)
        assert not dmaq
        self.stamp("g4")
        n = len(passes) - 1
        pa = mACC + 32 * (n & 1)
        for f, _ in self.store_tile(pa, mPH, 0, 0):
            f()

    def tail(self):
        k = self.k
        e = k.e
        k.wait(vm=self.ptoks[-1])
        e("s_barrier")
        self.flag_store(F_P)
        self.stamp("stored")
        t8, cc = v(1), v(2)
        e(f"v_and_b32 {t8}, 7, {v(vL)}")
        e(f"v_lshrrev_b32 {cc}, 3, {v(vL)}")
        e(f"v_lshrrev_b32 v3, 2, {cc}")
        e(f"v_lshlrev_b32 v3, 12, v3")
        e(f"v_bfe_u32 v4, {cc}, 1, 1")
        e(f"v_lshl_add_u32 v3, v4, 10, v3")
        e(f"v_and_b32 v4, 1, {cc}")
        e(f"v_lshl_add_u32 v3, v4, 9, v3")
        e(f"v_lshl_add_u32 v3, {t8}, 4, v3")
        e(f"s_lshr_b32 {sT0}, {sJ}, 2")
        e(f"s_lshl_b32 {sT0}, {sT0}, 11")
        e(f"s_and_b32 {sT1}, {sJ}, 3")
        e(f"s_lshl_b32 {sT1}, {sT1}, 7")
        e(f"s_add_u32 {sT0}, {sT0}, {sT1}")
        e(f"s_mul_i32 {sT1}, {sI}, {8 * TILE}")
        e(f"s_add_u32 {sT0}, {sT0}, {sT1}")
        e(f"s_add_u32 {sT0}, {sT0}, {PART_OFF}")
        e(f"s_lshl_b32 {sT1}, {sWV}, 13")
        e(f"s_add_u32 {sT0}, {sT0}, {sT1}")
        e(f"v_add_u32 v3, {sT0}, v3")
        e(f"v_lshrrev_b32 v4, 2, {cc}")
        e(f"v_lshlrev_b32 v4, 10, v4")
        e(f"v_and_b32 v5, 3, {cc}")
        e(f"v_lshl_add_u32 v4, v5, 8, v4")
        e(f"v_lshl_add_u32 v4, {t8}, 4, v4")
        e(f"s_lshl_b32 {sT0}, {sI}, 2")
        e(f"s_lshr_b32 {sT1}, {sJ}, 1")
        e(f"s_add_u32 {sT0}, {sT0}, {sT1}")
        e(f"s_mul_i32 {sT0}, {sT0}, 18432")
        e(f"s_and_b32 {sT1}, {sJ}, 1")
        e(f"s_lshl_b32 {sT1}, {sT1}, 7")
        e(f"s_add_u32 {sT0}, {sT0}, {sT1}")
        e(f"s_lshl_b32 {sT1}, {sWV}, 11")
        e(f"s_add_u32 {sT0}, {sT0}, {sT1}")
        e(f"s_add_u32 {sT0}, {sT0}, {X1_OFF}")
        e(f"v_add_u32 v4, {sT0}, v4")
        e(f"s_cmp_eq_u32 {sWV}, 0")
        e(f"s_cselect_b32 {sT3}, 0, 0x40000000")
        e(f"v_add_u32 v5, {sT3}, v3")
        e(f"v_add_u32 v6, {sT3}, v4")
        e(f"s_lshl_b32 {sT0}, {sJ}, 5")
        e(f"s_add_u32 {sT0}, {sT0}, {GATE}")
        e(f"v_lshl_add_u32 v7, {t8}, 2, {sT0}")
        gtok = k.ds(f"ds_read_b32 v7, v7")
        XR = 8
        xt = []
        for s_ in range(3):
            e(f"s_mov_b32 {sT2}, {8192 * s_}")
            xt.append(k.vmem(f"buffer_load_dwordx4 {v(XR + 4 * s_, 4)}, {'v4' if s_ < 2 else 'v6'}, {sWS}, {sT2} offen sc0 sc1"))
        self.poll("p")
        e("s_barrier")
        self.stamp("p flags")
        PR = 24
        pt = {}
        for s_ in range(3):
            for m in range(8):
                e(f"s_mov_b32 {sT2}, {m * TILE + 32768 * s_}")
                pt[s_, m] = k.vmem(f"buffer_load_dwordx4 {v(PR + 32 * s_ + 4 * m, 4)}, {'v3' if s_ < 2 else 'v5'}, {sWS}, "
                                   f"{sT2} offen sc0 sc1")
        k.wait(lg=gtok)
        e("v_add_f32 v7, 1.0, v7")
        e("v_rcp_f32 v7, v7")
        e(f"v_mul_u32_u24 v1, 1152, {t8}")
        e(f"v_lshl_add_u32 v1, {cc}, 4, v1")
        e(f"s_lshl_b32 {sT0}, {sWV}, 7")
        e(f"v_add_u32 v1, {sT0}, v1")
        A_ = 128
        for s_ in range(3):
            acc = A_ + 8 * s_
            k.wait(vm=xt[s_])
            for r in range(4):
                e(f"v_lshlrev_b32 {v(acc + 2 * r)}, 16, {v(XR + 4 * s_ + r)}")
                e(f"v_and_b32 {v(acc + 2 * r + 1)}, {sHI}, {v(XR + 4 * s_ + r)}")
            for r in range(8):
                e(f"v_mul_f32 {v(acc + r)}, {v(acc + r)}, v7")
            for m in range(8):
                k.wait(vm=pt[s_, m])
                T_ = 160 + 8 * (m & 1)
                for r in range(4):
                    x = v(PR + 32 * s_ + 4 * m + r)
                    e(f"v_lshlrev_b32 {v(T_ + 2 * r)}, 16, {x}")
                    e(f"v_and_b32 {v(T_ + 2 * r + 1)}, {sHI}, {x}")
                for r in range(4):
                    e(f"v_pk_add_f32 {v(acc + 2 * r, 2)}, {v(acc + 2 * r, 2)}, {v(T_ + 2 * r, 2)}")
            PK = 176 + 4 * s_
            for r in range(4):
                e(f"v_cvt_pk_bf16_f32 {v(PK + r)}, {v(acc + 2 * r)}, {v(acc + 2 * r + 1)}")
            if s_ == 2:
                L = k.label("noslot")
                e(f"s_cmp_lg_u32 {sWV}, 0")
                e(f"s_cbranch_scc1 {L}")
                e(f"ds_write_b128 v1, {v(PK, 4)} offset:1024")
                e(f"{L}:")
            else:
                k.ds(f"ds_write_b128 v1, {v(PK, 4)} offset:{512 * s_}")
        e("s_waitcnt lgkmcnt(0)")
        k.lg_done = k.lg
        e("s_barrier")
        e(f"s_mul_i32 {sT0}, {sWV}, 2304")
        e(f"v_lshl_add_u32 v1, {v(vL)}, 4, {sT0}")
        rt = [k.ds(f"ds_read_b128 {v(8 + 4 * n, 4)}, v1 offset:{1024 * n}") for n in range(3)]
        e(f"s_lshl_b32 {sT1}, {sI}, 3")
        e(f"s_add_u32 {sT1}, {sT1}, {sJ}")
        e(f"s_mul_i32 {sT1}, {sT1}, 9216")
        for n in range(3):
            k.wait(lg=rt[n])
            if n == 2:
                e("s_mov_b64 exec, 0xffff")
            k.vmem(f"buffer_store_dwordx4 {v(8 + 4 * n, 4)}, v1, {sOUT}, {sT1} offen offset:{1024 * n}")
        e("s_mov_b64 exec, -1")

    def write_stamps(self):
        if not self.stamps:
            return
        k = self.k
        e = k.e
        k.wait_all_vm()
        self.stamp("end")
        e(f"s_lshl_b32 {sT0}, s2, 2")
        e(f"s_add_u32 {sT0}, {sT0}, {sWV}")
        e(f"s_lshl_b32 {sT0}, {sT0}, 7")
        e(f"s_add_u32 {sT0}, {sT0}, {TS_OFF}")
        e("v_mov_b32 v2, 0")
        e("s_mov_b64 exec, 1")
        for n in range(self.nst):
            e(f"v_mov_b32 v1, s{sTS + n}")
            e(f"buffer_store_dword v1, v2, {sWS}, {sT0} offen offset:{4 * n}")
        e("s_mov_b64 exec, -1")

    def build(self):
        k = self.k
        self.prologue()
        self.front_mlp_regs_done = False
        self.front_hook()
        self.front()
        self.middle()
        self.mlp()
        self.tail()
        self.write_stamps()
        k.e("L_end:")
        k.e("s_endpgm")
        lines, n = fix_hazards(k.ins)
        self.nops = n
        return lines

    def front_hook(self):
        pass


def f2u(x):
    import struct
    return hex(struct.unpack("<I", struct.pack("<f", x))[0])


HEADER = """; Fused gated-mix block (sliding dilated attention + shift-MLP mixer), one persistent launch.
; 32 token clusters (64 tokens) x 8 members; hand-offs through d_ws with write-through stores and nonce flags.
; @launch grid=(256,1,1) block=(256,1,1) lds={lds}
.amdgcn_target "amdgcn-amd-amdhsa--gfx950"
.text
.globl {name}
.p2align 8
.type {name},@function
{name}:
"""
FOOTER = """
.section .rodata,"a"
.p2align 6
.amdhsa_kernel {name}
  .amdhsa_next_free_vgpr 512
  .amdhsa_next_free_sgpr 102
  .amdhsa_accum_offset 256
  .amdhsa_group_segment_fixed_size 0
  .amdhsa_kernarg_size 96
  .amdhsa_user_sgpr_count 2
  .amdhsa_user_sgpr_kernarg_segment_ptr 1
  .amdhsa_system_sgpr_workgroup_id_x 1
.end_amdhsa_kernel
"""


def make(**kw):
    g = Gen(**kw)
    lines = g.build()
    txt = HEADER.format(name=NAME, lds=LDS_BYTES) + "\n".join(lines) + FOOTER.format(name=NAME)
    return txt, g


if __name__ == "__main__":
    import argparse
    ap = argparse.ArgumentParser()
    ap.add_argument("-o", default="gated_mix__sliding_local_dilated__mixer_s_mlp__prompt.s")
    ap.add_argument("--stamps", action="store_true")
    ap.add_argument("--la", type=int, default=4)
    a_ = ap.parse_args()
    txt, g = make(stamps=a_.stamps, LA=a_.la)
    open(a_.o, "w").write(txt)
    print("instructions:", sum(1 for l in txt.split("\n") if l and not l.startswith((";", ".")) and not l.endswith(":")),
          "bytes of text:", len(txt), "hazard nops:", g.nops, "stages:", len(g.stages))
    if a_.stamps:
        print(g.stamp_names)
```
